```python
import torch

def _softmax(x, axis=-1):
    return torch.softmax(x, dim=axis)
def _gelu(x):
    return torch.nn.functional.gelu(x, approximate="tanh")
def _silu(x):
    return torch.nn.functional.silu(x)
def _sigmoid(x):
    return torch.sigmoid(x)
def _layernorm(x, axis=-1, eps=1e-5):
    m = x.mean(dim=axis, keepdim=True)
    v = x.var(dim=axis, keepdim=True, unbiased=False)
    return (x - m) / torch.sqrt(v + eps)
def _scatter_add(tgt, idx, src, axis=0):
    return tgt.clone().index_add_(axis, idx, src)
def _segment_sum(src, seg, n):
    out = torch.zeros((n,) + src.shape[1:], dtype=src.dtype)
    return out.index_add_(0, seg, src)
def _pad(x, pw):
    flat = tuple(v for pair in reversed(pw) for v in pair)
    return torch.nn.functional.pad(x, flat)

kernel_name = 'sequential_preLN__ssm_conv_s4__swiglu_ffn__prompt'

def setup_inputs():

    _w = (lambda a: (lambda t: t.to(torch.bfloat16) if t.is_floating_point() else t)(torch.as_tensor(a)))
    def _A_setup():
        B, L, D, N = 1, 2048, 448, 256
        A_re = -(lambda _x: torch.exp(torch.as_tensor(_x)))((lambda *s: torch.randn(*s, dtype=torch.bfloat16) * 3.2)(D, N))
        A_im = torch.pi * (lambda *s: torch.randn(*s, dtype=torch.bfloat16) * 0.05)(D, N)
        B_re = (lambda *s: torch.randn(*s, dtype=torch.bfloat16) * 0.05)(D, N)
        B_im = (lambda *s: torch.randn(*s, dtype=torch.bfloat16) * 0.05)(D, N)
        C_re = (lambda *s: torch.randn(*s, dtype=torch.bfloat16) * 0.05)(D, N)
        C_im = (lambda *s: torch.randn(*s, dtype=torch.bfloat16) * 0.05)(D, N)
        log_dt = (lambda *s: torch.randn(*s, dtype=torch.bfloat16) * 0.05)(D) * 0.5 - 4.0
        Dskip = (lambda *s: torch.randn(*s, dtype=torch.bfloat16) * 0.05)(D)
        return {
            "u": _w((lambda *s: torch.randn(*s, dtype=torch.bfloat16) * 0.05)(B, L, D)),
            "A_re": _w(A_re),
            "A_im": _w(A_im),
            "B_re": _w(B_re),
            "B_im": _w(B_im),
            "C_re": _w(C_re),
            "C_im": _w(C_im),
            "log_dt": _w(log_dt),
            "Dskip": _w(Dskip),
        }
    _A_in = _A_setup()

    def _B_setup():
        B, S, D, F = 1, 2048, 448, 1792
        return {
            "x": _w((lambda *s: torch.randn(*s, dtype=torch.bfloat16) * 0.05)(B, S, D)),
            "w_gate": _w((lambda *s: torch.randn(*s, dtype=torch.bfloat16) * 0.05)(D, F)),
            "w_up": _w((lambda *s: torch.randn(*s, dtype=torch.bfloat16) * 0.05)(D, F)),
            "w_down": _w((lambda *s: torch.randn(*s, dtype=torch.bfloat16) * 0.05)(F, D)),
        }
    _B_in = _B_setup()

    return {
        "A_u": _A_in["u"],
        "A_A_re": _A_in["A_re"],
        "A_A_im": _A_in["A_im"],
        "A_B_re": _A_in["B_re"],
        "A_B_im": _A_in["B_im"],
        "A_C_re": _A_in["C_re"],
        "A_C_im": _A_in["C_im"],
        "A_log_dt": _A_in["log_dt"],
        "A_Dskip": _A_in["Dskip"],
        "B_x": _B_in["x"],
        "B_w_gate": _B_in["w_gate"],
        "B_w_up": _B_in["w_up"],
        "B_w_down": _B_in["w_down"],
    }

def reference(A_u, A_A_re, A_A_im, A_B_re, A_B_im, A_C_re, A_C_im, A_log_dt, A_Dskip, B_x, B_w_gate, B_w_up, B_w_down):
    def _A_ref(u, A_re, A_im, B_re, B_im, C_re, C_im, log_dt, Dskip):
        Bsz, L, D = u.shape
        dt = torch.exp(log_dt)[:, None]
        A = A_re + 1j * A_im
        Bc = B_re + 1j * B_im
        Cc = C_re + 1j * C_im
        logdA = dt * A
        dB = dt * Bc
        l = (lambda x, dt: x.to(dt))(torch.arange(L), A_re.dtype)
        P = torch.exp(logdA[:, :, None] * l[None, None, :])
        K = torch.einsum("dn,dnl,dn->dl", Cc, P, dB).real
        L2 = 2 * L
        Kp = _pad(K, ((0, 0), (0, L)))
        up = (lambda x, *d: x.permute(*d))(u, 0, 2, 1)
        up = _pad(up, ((0, 0), (0, 0), (0, L)))
        Kf = (lambda x, axes=(-2,-1): torch.fft.rfft2(x.float(), dim=axes))(Kp[:, None, :], axes=(-2, -1))
        Uf = (lambda x, axes=(-2,-1): torch.fft.rfft2(x.float(), dim=axes))(up[:, :, None, :], axes=(-2, -1))
        Yf = Uf * Kf[None, :, :, :]
        y = (lambda x, s, axes=(-2,-1): torch.fft.irfft2(x, s=s, dim=axes).to(torch.bfloat16))(Yf, (1, L2), axes=(-2, -1))[:, :, 0, :L]
        y = (lambda x, *d: x.permute(*d))(y, 0, 2, 1) + u * Dskip[None, None, :]
        return y

    def _B_ref(x, w_gate, w_up, w_down):
        g = _silu(x @ w_gate)
        u = x @ w_up
        return (g * u) @ w_down

    x = A_u
    h = x + _A_ref(_layernorm(x, axis=-1), A_A_re, A_A_im, A_B_re, A_B_im, A_C_re, A_C_im, A_log_dt, A_Dskip)
    h2 = h + _B_ref(_layernorm(h, axis=-1), B_w_gate, B_w_up, B_w_down)
    return h2
```

```python
import re

def vr(i, n=1):
    return f"v{i}" if n == 1 else f"v[{i}:{i+n-1}]"
def ar(i, n=1):
    return f"a{i}" if n == 1 else f"a[{i}:{i+n-1}]"
def sr(i, n=1):
    return f"s{i}" if n == 1 else f"s[{i}:{i+n-1}]"

TRANS = ("v_exp_f32", "v_log_f32", "v_rcp_f32", "v_rsq_f32", "v_sqrt_f32", "v_sin_f32", "v_cos_f32", "v_rcp_iflag_f32")
_REG = re.compile(r"^(-?)(\|?)(abs\()?([vas])(?:(\d+)|\[(\d+):(\d+)\])\)?\|?$")

def parse_reg(op):
    op = op.strip()
    m = _REG.match(op)
    if m:
        k = m.group(4)
        if m.group(5) is not None:
            return [(k, int(m.group(5)))]
        return [(k, i) for i in range(int(m.group(6)), int(m.group(7)) + 1)]
    o = op.lstrip("-")
    if o == "vcc": return [("s", "vcc_lo"), ("s", "vcc_hi")]
    if o in ("vcc_lo", "vcc_hi"): return [("s", o)]
    if o == "exec": return [("s", "exec_lo"), ("s", "exec_hi")]
    if o in ("exec_lo", "exec_hi"): return [("s", o)]
    if o == "m0": return [("s", "m0")]
    return []

def split_ops(s):
    out, depth, cur = [], 0, ""
    for ch in s:
        if ch in "[(": depth += 1
        if ch in "])": depth -= 1
        if ch == "," and depth == 0:
            out.append(cur.strip()); cur = ""
        else:
            cur += ch
    if cur.strip(): out.append(cur.strip())
    return out

class Ins:
    __slots__ = ("text", "mn", "ops", "mods", "wr", "rd", "kind", "passes", "cread", "states")
    def __init__(self, text):
        self.text = text
        t = text.strip()
        parts = t.split(None, 1)
        self.mn = parts[0]
        rest = parts[1] if len(parts) > 1 else ""
        ops = split_ops(rest)
        self.mods = ""
        if ops:
            last = ops[-1]
            m = re.match(r"^(\S+(?:\([^)]*\))?)\s+(.*)$", last)
            if m and not last.startswith("hwreg"):
                ops[-1] = m.group(1); self.mods = m.group(2)
        self.ops = ops
        self.wr, self.rd, self.cread = [], [], []
        self.passes = 0
        self.states = 1
        mn = self.mn
        R = lambda i: parse_reg(ops[i]) if i < len(ops) else []
        allr = lambda a: [x for i in range(a, len(ops)) for x in parse_reg(ops[i])]
        if mn == "s_nop":
            self.kind = "nop"; self.states = int(ops[0], 0) + 1
        elif mn.startswith("v_mfma"):
            self.kind = "mfma"
            self.passes = 8 if "32x32x16" in mn else 4 if "16x16x32" in mn else None
            assert self.passes, text
            self.wr = R(0); self.rd = R(1) + R(2) + R(3); self.cread = R(3)
        elif mn.startswith("v_"):
            self.kind = "trans" if re.sub(r"_e(32|64)$", "", mn) in TRANS else "valu"
            if mn.startswith("v_cmp"):
                self.wr = R(0); self.rd = allr(1)
                if mn.startswith("v_cmpx"): self.wr += parse_reg("exec")
            elif mn.startswith(("v_readfirstlane", "v_readlane")):
                self.wr = R(0); self.rd = allr(1)
            elif mn.startswith(("v_add_co", "v_sub_co", "v_addc_co", "v_subb_co", "v_subrev_co")):
                self.wr = R(0) + R(1); self.rd = allr(2)
            elif mn.startswith(("v_permlane32_swap", "v_permlane16_swap", "v_swap")):
                self.wr = R(0) + R(1); self.rd = R(0) + R(1)
            else:
                self.wr = R(0); self.rd = allr(1)
                if mn.startswith(("v_fmac", "v_dot2c", "v_pk_fmac", "v_writelane")) or "_dpp" in mn or ("row_" in self.mods or "quad_perm" in self.mods):
                    self.rd += R(0)
                if mn.startswith("v_cndmask") and len(ops) == 3:
                    self.rd += parse_reg("vcc")
        elif mn.startswith("ds_"):
            self.kind = "ds"
            if mn.startswith(("ds_read", "ds_bpermute", "ds_permute", "ds_swizzle")):
                self.wr = R(0); self.rd = allr(1)
            else:
                self.rd = allr(0)
        elif mn.startswith(("buffer_", "global_")):
            self.kind = "vmem"
            isld = "_load" in mn
            lds = bool(re.search(r"\blds\b", self.mods)) or "load_lds" in mn
            if mn in ("buffer_wbl2", "buffer_inv"):
                pass
            elif isld and not lds:
                self.wr = R(0); self.rd = allr(1)
            elif "atomic" in mn and "sc0" in self.mods and mn.startswith("global"):
                self.wr = R(0); self.rd = allr(1)
            elif "atomic" in mn and "sc0" in self.mods:
                self.wr = R(0); self.rd = allr(0)
            else:
                self.rd = allr(0)
            if lds: self.rd += [("s", "m0")]
        elif mn.startswith("s_"):
            self.kind = "salu"
            if mn.startswith(("s_cmp", "s_cbranch", "s_branch", "s_waitcnt", "s_barrier", "s_endpgm", "s_sleep", "s_setprio", "s_bitcmp")):
                self.rd = allr(0)
            elif mn.startswith("s_load") or mn.startswith("s_memtime") or mn.startswith("s_memrealtime"):
                self.kind = "smem"; self.wr = R(0); self.rd = allr(1)
            else:
                self.wr = R(0); self.rd = allr(1)
                if "saveexec" in mn: self.wr += parse_reg("exec")
        else:
            raise ValueError("unknown instruction: " + text)

def is_valu(i): return i.kind in ("valu", "trans")

def needed_gap(p, c):
    need = 0
    pw = set(p.wr); cr = set(c.rd); cw = set(c.wr)
    pv = {x for x in pw if x[0] in "va"}
    ps = {x for x in pw if x[0] == "s"}
    if is_valu(p):
        if c.kind == "mfma" and pv & cr: need = max(need, 2)
        if p.kind == "trans" and is_valu(c) and pv & cr: need = max(need, 1)
        if p.kind == "trans" and c.kind == "mfma" and pv & cr: need = max(need, 2)
        if is_valu(c) and pv & cr:
            if c.mn.startswith(("v_readfirstlane", "v_readlane")): need = max(need, 1)
            if c.mn.startswith("v_permlane"): need = max(need, 2)
            if "_dpp" in c.mn or "row_" in c.mods or "quad_perm" in c.mods: need = max(need, 2)
            if ("sdwa" in p.mn or "op_sel" in p.mods) and not p.mn.startswith("v_pk_"): need = max(need, 1)
        if ps:
            if is_valu(c) and ps & cr:
                need = max(need, 4 if c.mn.startswith(("v_readlane", "v_writelane")) else 2)
            if c.kind == "vmem" and ps & cr: need = max(need, 5)
            ex = {("s", "exec_lo"), ("s", "exec_hi")}
            if ps & ex:
                if c.kind == "mfma": need = max(need, 4)
                if is_valu(c): need = max(need, 5 if ("_dpp" in c.mn or "row_" in c.mods) else 4 if c.mn.startswith(("v_read", "v_writelane", "v_permlane")) else 0)
    if p.kind == "salu":
        if ("s", "m0") in pw and (("s", "m0") in cr or "addtid" in c.mn): need = max(need, 1)
    if p.kind == "mfma":
        n = p.passes
        full = {4: 8, 8: 12}[n]
        if c.kind == "mfma":
            cc = set(c.cread)
            ab = cr - cc if False else set(parse_reg(c.ops[1]) + parse_reg(c.ops[2]))
            if pv & ab: need = max(need, full)
            if pv & cc:
                if not (set(p.wr) == cc and p.passes == c.passes):
                    need = max(need, {4: 6, 8: 10}[n])
            if pv & cw and not (pv & cc): need = max(need, {4: 6, 8: 10}[n])
        elif is_valu(c) or c.kind in ("ds", "vmem"):
            if pv & (cr | cw): need = max(need, full)
        if is_valu(c) and set(p.cread) & cw: need = max(need, {4: 3, 8: 7}[n])
    if p.kind == "vmem" and ("store" in p.mn or "atomic" in p.mn) and ("x4" in p.mn or "x3" in p.mn):
        data = set(x for x in p.rd if x[0] in "va")
        if data & cw: need = max(need, 2 if is_valu(c) else 1)
    return need

class Asm:
    def __init__(self):
        self.items = []
    def __call__(self, s):
        for line in s.split("\n"):
            line = line.strip()
            if line: self.items.append(line)
    def label(self, n): self.items.append(n + ":")
    def c(self, s): self.items.append("; " + s)

    @staticmethod
    def _isins(s):
        return not (s.endswith(":") or s.startswith((";", ".")))

    def padded(self):
        out = []
        hist = []
        def gap_needed(ins, hist):
            need = 0; dist = 0
            for p in reversed(hist):
                g = needed_gap(p, ins)
                if g > dist: need = max(need, g - dist)
                dist += p.states
                if dist > 24: break
            return need
        labels = {}
        seq = []
        for s in self.items:
            if not self._isins(s):
                out.append(s)
                if s.endswith(":"): labels[s[:-1]] = len(seq)
                continue
            body = s.split(";")[0].strip()
            ins = Ins(body)
            n = gap_needed(ins, hist)
            while n > 0:
                k = min(n, 16)
                nop = Ins(f"s_nop {k-1}")
                out.append(nop.text); hist.append(nop); seq.append(nop); n -= k
            out.append(s); hist.append(ins); seq.append(ins)
            if len(hist) > 64: hist = hist[-48:]
            if ins.mn in ("s_endpgm",): hist = []
        for j, ins in enumerate(seq):
            if ins.mn.startswith(("s_cbranch", "s_branch")):
                tgt = ins.ops[0]
                if tgt not in labels: continue
                i = labels[tgt]
                h = seq[max(0, j - 30):j + 1]
                for k in range(i, min(i + 30, len(seq))):
                    n = gap_needed(seq[k], h)
                    if n > 0:
                        raise RuntimeError(f"branch hazard: {ins.text} -> {seq[k].text} short by {n}")
                    h = h + [seq[k]]
                    if seq[k].mn in ("s_branch", "s_endpgm"): break
        return out

    def text(self):
        res = []
        for s in self.padded():
            res.append(s if (s.endswith(":") or s.startswith(".")) else "    " + s)
        return "\n".join(res) + "\n"

def kernel_desc(name, vgpr, sgpr, accum):
    return f""".amdhsa_kernel {name}
  .amdhsa_next_free_vgpr {vgpr}
  .amdhsa_next_free_sgpr {sgpr}
  .amdhsa_accum_offset {accum}
  .amdhsa_group_segment_fixed_size 0
  .amdhsa_kernarg_size 128
  .amdhsa_user_sgpr_count 2
  .amdhsa_user_sgpr_kernarg_segment_ptr 1
  .amdhsa_system_sgpr_workgroup_id_x 1
  .amdhsa_float_denorm_mode_32 3
.end_amdhsa_kernel
"""
```

```python
from asmlib import *

KA = dict(x=0, a_re=8, a_im=16, b_re=24, b_im=32, c_re=40, c_im=48, log_dt=56, dskip=64, bx=72,
          wg=80, wu=88, wd=96, out=104, dbg=112, ws=120)
L, D, F, NST = 2048, 448, 1792, 256
WS_XT    = 0x000000
WS_STATS = 0x1C0000
WS_CS    = 0x1C8000
WS_HT    = 0x200000
WS_HID   = 0x400000
WS_SIZE  = 0xC00000

def srd(a, s, ptr, nbytes):
    a(f"s_mov_b32 s{s}, s{ptr}")
    a(f"s_and_b32 s{s+1}, s{ptr+1}, 0xffff")
    a(f"s_mov_b32 s{s+2}, {nbytes:#x}")
    a(f"s_mov_b32 s{s+3}, 0x20000")

def srd_off(a, s, ptr, off, nbytes):
    a(f"s_add_u32 s{s}, s{ptr}, {off:#x}")
    a(f"s_addc_u32 s{s+1}, s{ptr+1}, 0")
    a(f"s_and_b32 s{s+1}, s{s+1}, 0xffff")
    a(f"s_mov_b32 s{s+2}, {nbytes:#x}")
    a(f"s_mov_b32 s{s+3}, 0x20000")

def wave_sum(a, regs):
    for m in ("row_shr:1 row_mask:0xf", "row_shr:2 row_mask:0xf", "row_shr:4 row_mask:0xf", "row_shr:8 row_mask:0xf",
              "row_bcast:15 row_mask:0xa", "row_bcast:31 row_mask:0xc"):
        for r in regs:
            a(f"v_add_f32_dpp v{r}, v{r}, v{r} {m} bank_mask:0xf")

def bf16_round(a, dst, src):
    a(f"v_cvt_pk_bf16_f32 v{dst}, v{src}, v{src}")
    a(f"v_lshlrev_b32 v{dst}, 16, v{dst}")

import struct
def float_bits(f):
    return struct.unpack("<I", struct.pack("<f", f))[0]
```

```python
import sys, os
sys.path.insert(0, os.path.dirname(os.path.abspath(__file__)))
from common import *
REF = "sequential_preLN__ssm_conv_s4__swiglu_ffn__prompt.s.ref"

def header():
    out = []
    for line in open(REF):
        if line.startswith("; Override launch") : break
        out.append(line.rstrip("\n"))
    return out

def build(kernels, path):
    hdr = header()
    parts = [k() for k in kernels]
    txt = "\n".join(hdr) + "\n"
    for a, desc, launch in parts: txt += launch + "\n"
    txt += '.amdgcn_target "amdgcn-amd-amdhsa--gfx950"\n.text\n'
    for a, desc, launch in parts: txt += a.text()
    txt += '.section .rodata,"a"\n'
    for a, desc, launch in parts: txt += ".p2align 6\n" + desc
    open(path, "w").write(txt)
    print(path, len(txt), "bytes")

if __name__ == "__main__":
    which = sys.argv[1].split(",")
    out = sys.argv[2]
    import importlib
    ks = []
    for w in which:
        mod, fn = (w.split(".") + [None])[:2]
        m = importlib.import_module(mod)
        ks.append(getattr(m, fn or mod))
    build(ks, out)
```
